```python
import torch

def _softmax(x, axis=-1):
    return torch.softmax(x, dim=axis)
def _gelu(x):
    return torch.nn.functional.gelu(x, approximate="tanh")
def _silu(x):
    return torch.nn.functional.silu(x)
def _sigmoid(x):
    return torch.sigmoid(x)
def _layernorm(x, axis=-1, eps=1e-5):
    m = x.mean(dim=axis, keepdim=True)
    v = x.var(dim=axis, keepdim=True, unbiased=False)
    return (x - m) / torch.sqrt(v + eps)
def _scatter_add(tgt, idx, src, axis=0):
    return tgt.clone().index_add_(axis, idx, src)
def _segment_sum(src, seg, n):
    out = torch.zeros((n,) + src.shape[1:], dtype=src.dtype)
    return out.index_add_(0, seg, src)
def _pad(x, pw):
    flat = tuple(v for pair in reversed(pw) for v in pair)
    return torch.nn.functional.pad(x, flat)

kernel_name = 'concat_heads__sliding_local_dilated__linear_attn_block__prompt'

def setup_inputs():

    _w = (lambda a: (lambda t: t.to(torch.bfloat16) if t.is_floating_point() else t)(torch.as_tensor(a)))
    def _A_setup():
        B, S, D = 1, 2048, 640
        return {
            "x": _w((lambda *s: torch.randn(*s, dtype=torch.bfloat16) * 0.2)(B, S, D)),
            "wqkv": _w((lambda *s: torch.randn(*s, dtype=torch.bfloat16) * 0.2)(D, 3 * D)),
            "wo": _w((lambda *s: torch.randn(*s, dtype=torch.bfloat16) * 0.05)(D, D)),
        }
    _A_in = _A_setup()

    def _B_setup():
        B, S, D = 1, 2048, 640
        return {
            "x": _w((lambda *s: torch.randn(*s, dtype=torch.bfloat16) * 0.05)(B, S, D)),
            "wqkv": _w((lambda *s: torch.randn(*s, dtype=torch.bfloat16) * 1.6)(D, 3 * D)),
            "wo": _w((lambda *s: torch.randn(*s, dtype=torch.bfloat16) * 0.8)(D, D)),
        }
    _B_in = _B_setup()

    return {
        "A_x": _A_in["x"],
        "A_wqkv": _A_in["wqkv"],
        "A_wo": _A_in["wo"],
        "B_x": _B_in["x"],
        "B_wqkv": _B_in["wqkv"],
        "B_wo": _B_in["wo"],
    }

def reference(A_x, A_wqkv, A_wo, B_x, B_wqkv, B_wo):
    def _A_ref(x, wqkv, wo):
        B, S, D = x.shape
        H = 32; Dh = D // H
        W, dil = 8, 2
        qkv = (lambda x, *d: x.permute(*d))((x @ wqkv).reshape(B, S, 3, H, Dh), 2, 0, 3, 1, 4)
        q, k, v = qkv[0], qkv[1], qkv[2]
        scale = Dh ** -0.5
        pos = torch.arange(S)
        off = torch.arange(W) * dil
        idx = pos[:, None] - off[None, :]
        mask = idx >= 0
        idx_c = torch.where(mask, idx, 0).reshape(-1)
        kg = k[:, :, idx_c, :].reshape(B, H, S, W, Dh)
        vg = v[:, :, idx_c, :].reshape(B, H, S, W, Dh)
        logits = torch.einsum("bhsd,bhswd->bhsw", q, kg) * scale
        logits = torch.where(mask[None, None, :, :], logits, -1e9)
        attn = _softmax(logits, axis=-1)
        o = torch.einsum("bhsw,bhswd->bhsd", attn, vg)
        return (lambda x, *d: x.permute(*d))(o, 0, 2, 1, 3).reshape(B, S, D) @ wo

    def _B_ref(x, wqkv, wo):
        B, S, D = x.shape
        H = 32; Dh = D // H
        qkv = (lambda x, *d: x.permute(*d))((x @ wqkv).reshape(B, S, 3, H, Dh), 2, 0, 3, 1, 4)
        q, k, v = qkv[0], qkv[1], qkv[2]
        phi = lambda t: torch.where(t > 0, t + 1, torch.exp(t)) + 1e-6
        pq, pk = phi(q), phi(k)
        kv = torch.einsum("bhsd,bhse->bhde", pk, v)
        z = torch.einsum("bhsd->bhd", pk)
        num = torch.einsum("bhqd,bhde->bhqe", pq, kv)
        den = torch.einsum("bhqd,bhd->bhq", pq, z)[..., None] + 1e-6
        o = num / den
        return (lambda x, *d: x.permute(*d))(o, 0, 2, 1, 3).reshape(B, S, D) @ wo

    a = _A_ref(A_x, A_wqkv, A_wo)
    b = _B_ref(B_x, B_wqkv, B_wo)
    return torch.concatenate([a, b], axis=-1)
```

```python
import re


class Reg:
    __slots__ = ("k", "i", "n")

    def __init__(self, k, i, n=1):
        self.k, self.i, self.n = k, i, n

    def __str__(self):
        if self.n == 1:
            return f"{self.k}{self.i}"
        return f"{self.k}[{self.i}:{self.i + self.n - 1}]"

    def __getitem__(self, key):
        if isinstance(key, slice):
            a = key.start or 0
            b = key.stop if key.stop is not None else self.n
            assert 0 <= a < b <= self.n, (a, b, self.n)
            return Reg(self.k, self.i + a, b - a)
        assert 0 <= key < self.n
        return Reg(self.k, self.i + key, 1)

    def regs(self):
        return [(self.k, self.i + j) for j in range(self.n)]


def V(i, n=1): return Reg("v", i, n)
def A(i, n=1): return Reg("a", i, n)
def S(i, n=1): return Reg("s", i, n)


VCC = Reg("s", 106, 2)
EXEC = Reg("s", 126, 2)
M0 = Reg("s", 124, 1)
SCC = Reg("s", 253, 1)


def rstr(x):
    if isinstance(x, Reg):
        if x.k == "s" and x.i == 106: return "vcc"
        if x.k == "s" and x.i == 126: return "exec"
        if x.k == "s" and x.i == 124: return "m0"
        return str(x)
    if isinstance(x, float):
        return repr(x)
    if isinstance(x, int):
        if -16 <= x <= 64: return str(x)
        return hex(x & 0xFFFFFFFF)
    return str(x)


def regs_of(*xs):
    out = []
    for x in xs:
        if isinstance(x, Reg):
            out += x.regs()
        elif isinstance(x, Neg):
            out += x.r.regs()
    return out


class Neg:
    def __init__(self, r): self.r = r
    def __str__(self): return "-" + rstr(self.r)


class Ins:
    __slots__ = ("text", "rd", "wr", "kind", "extra")

    def __init__(self, text, rd=(), wr=(), kind="misc", extra=None):
        self.text, self.rd, self.wr, self.kind, self.extra = text, list(rd), list(wr), kind, extra


class Alloc:
    def __init__(self, kind, lo, hi):
        self.kind, self.lo, self.hi = kind, lo, hi
        self.used = [False] * hi
        self.high = 0

    def alloc(self, n, align=1):
        if n >= 2 and align < 2: align = 2
        i = (self.lo + align - 1) // align * align
        while i + n <= self.hi:
            if not any(self.used[i:i + n]):
                for j in range(i, i + n): self.used[j] = True
                self.high = max(self.high, i + n)
                return Reg(self.kind, i, n)
            i += align
        raise RuntimeError(f"out of {self.kind} regs (want {n})")

    def free(self, r):
        for j in range(r.i, r.i + r.n):
            assert self.used[j], f"double free {r}"
            self.used[j] = False

    def nfree(self):
        return sum(1 for j in range(self.lo, self.hi) if not self.used[j])


TRANS = {"v_exp_f32", "v_rcp_f32", "v_log_f32", "v_rsq_f32", "v_sqrt_f32"}


class Asm:
    def __init__(self):
        self.ins = []
        self.vm = []
        self.lg = []
        self.tagc = 0

    def raw(self, text, rd=(), wr=(), kind="misc", extra=None):
        self.ins.append(Ins(text, rd, wr, kind, extra))

    def comment(self, t):
        self.ins.append(Ins("; " + t, kind="comment"))

    def label(self, name):
        self.ins.append(Ins(name + ":", kind="label"))

    def salu(self, op, dst, *src, wr_scc=True):
        ops = ", ".join(rstr(x) for x in (dst,) + src)
        wr = regs_of(dst) + (SCC.regs() if wr_scc else [])
        rd = regs_of(*src)
        if op in ("s_cselect_b32", "s_cselect_b64", "s_addc_u32"): rd += SCC.regs()
        self.raw(f"{op} {ops}", rd, wr, "salu")

    def s_mov(self, dst, src):
        op = "s_mov_b64" if dst.n == 2 else "s_mov_b32"
        self.salu(op, dst, src, wr_scc=False)

    def s_cmp(self, op, a, b):
        self.raw(f"{op} {rstr(a)}, {rstr(b)}", regs_of(a, b), SCC.regs(), "salu")

    def s_branch(self, op, label):
        self.raw(f"{op} {label}", [], [], "branch")

    def s_load(self, dst, base, off):
        op = {1: "s_load_dword", 2: "s_load_dwordx2", 4: "s_load_dwordx4", 8: "s_load_dwordx8", 16: "s_load_dwordx16"}[dst.n]
        self.raw(f"{op} {dst}, {base}, {off}", regs_of(base), regs_of(dst), "smem")

    def nop(self, n=0):
        self.raw(f"s_nop {n}", kind="nop", extra=n + 1)

    def barrier(self):
        self.raw("s_barrier", kind="misc")

    def waitcnt(self, vm=None, lgkm=None):
        parts = []
        if vm is not None:
            assert 0 <= vm <= 63
            parts.append(f"vmcnt({vm})")
        if lgkm is not None:
            assert 0 <= lgkm <= 15
            parts.append(f"lgkmcnt({lgkm})")
        self.raw("s_waitcnt " + " ".join(parts), kind="misc")

    def valu(self, op, dst, *src, extra_rd=(), extra_wr=(), suffix=""):
        ops = ", ".join(rstr(x) if not isinstance(x, Neg) else str(x) for x in (dst,) + src)
        kind = "trans" if op in TRANS else "valu"
        rd = regs_of(*src) + regs_of(*extra_rd)
        wr = regs_of(dst) + regs_of(*extra_wr)
        self.raw(f"{op} {ops}{suffix}", rd, wr, kind)

    def v_mov(self, dst, src): self.valu("v_mov_b32", dst, src)

    def v_cndmask(self, dst, f, t, mask):
        self.valu("v_cndmask_b32_e64", dst, f, t, mask)

    def v_cmp(self, op, dst, a, b):
        self.valu(op + ("_e64" if dst is not VCC else ""), dst, a, b)

    def readfirstlane(self, sdst, v):
        self.raw(f"v_readfirstlane_b32 {sdst}, {v}", regs_of(v), regs_of(sdst), "rfl")

    def permswap(self, which, a, b):
        self.raw(f"v_permlane{which}_swap_b32 {a}, {b}", regs_of(a, b), regs_of(a, b), "perm")

    def cvt_pk(self, dst, a, b):
        self.valu("v_cvt_pk_bf16_f32", dst, a, b)

    def exp2(self, dst, src, clamp=False):
        if clamp:
            self.raw(f"v_exp_f32_e64 {dst}, {rstr(src)} clamp", regs_of(src), regs_of(dst), "trans")
        else:
            self.valu("v_exp_f32", dst, src)

    def acc_mov(self, dst, src):
        self.raw(f"v_accvgpr_mov_b32 {dst}, {src}", regs_of(src), regs_of(dst), "valu")

    def set_exec(self, val):
        if isinstance(val, Reg):
            self.raw(f"s_mov_b64 exec, {val}", regs_of(val), EXEC.regs(), "salu")
        elif val == (1 << 64) - 1 or val == -1:
            self.raw("s_mov_b64 exec, -1", [], EXEC.regs(), "salu")
        else:
            raise ValueError("use SGPR pair masks")

    def mfma(self, d, a, b, c):
        assert d.n == 4 and a.n == 4 and b.n == 4
        self.raw(f"v_mfma_f32_16x16x32_bf16 {d}, {a}, {b}, {rstr(c)}", regs_of(a, b, c), regs_of(d), "mfma",
                 extra=(d, a, b, c))

    def _tag(self):
        self.tagc += 1
        assert len(self.vm) < 63, "too many outstanding vmem ops"
        return self.tagc

    def buf_load(self, dst, voff, srd, soff=0, off=0, flags=""):
        op = {1: "buffer_load_dword", 2: "buffer_load_dwordx2", 4: "buffer_load_dwordx4"}[dst.n]
        assert 0 <= off <= 4095
        o = f" offset:{off}" if off else ""
        self.raw(f"{op} {dst}, {voff}, {srd}, {rstr(soff)} offen{o}{flags}", regs_of(voff, srd, soff), regs_of(dst), "vmem_ld")
        t = self._tag(); self.vm.append(t); return t

    def buf_load_lds(self, voff, srd, soff=0, off=0, flags=""):
        assert 0 <= off <= 4095
        o = f" offset:{off}" if off else ""
        self.raw(f"buffer_load_dwordx4 {voff}, {srd}, {rstr(soff)} offen{o}{flags} lds", regs_of(voff, srd, soff, M0), [], "dma")
        t = self._tag(); self.vm.append(t); return t

    def buf_store(self, src, voff, srd, soff=0, off=0, flags=""):
        op = {1: "buffer_store_dword", 2: "buffer_store_dwordx2", 4: "buffer_store_dwordx4"}[src.n]
        assert 0 <= off <= 4095
        o = f" offset:{off}" if off else ""
        self.raw(f"{op} {src}, {voff}, {srd}, {rstr(soff)} offen{o}{flags}", regs_of(src, voff, srd, soff), [], "vmem_st",
                 extra=src)
        t = self._tag(); self.vm.append(t); return t

    def buf_atomic_add_f32(self, src, voff, srd, soff=0, off=0, flags=""):
        o = f" offset:{off}" if off else ""
        self.raw(f"buffer_atomic_add_f32 {src}, {voff}, {srd}, {rstr(soff)} offen{o}{flags}", regs_of(src, voff, srd, soff), [],
                 "vmem_st", extra=src)
        t = self._tag(); self.vm.append(t); return t

    def buf_atomic_add_ret(self, data, voff, srd, soff=0, off=0, flags=" sc0"):
        o = f" offset:{off}" if off else ""
        self.raw(f"buffer_atomic_add {data}, {voff}, {srd}, {rstr(soff)} offen{o}{flags}", regs_of(data, voff, srd, soff),
                 regs_of(data), "vmem_ld")
        t = self._tag(); self.vm.append(t); return t

    def wait_vm(self, tag):
        if tag not in self.vm: return
        idx = self.vm.index(tag)
        n = len(self.vm) - idx - 1
        self.waitcnt(vm=min(n, 63))
        self.vm = self.vm[idx + 1:]

    def wait_vm_all(self):
        self.waitcnt(vm=0); self.vm = []

    def ds_read(self, dst, addr, off=0, tr=False):
        assert 0 <= off <= 65535, off
        if tr:
            assert dst.n == 2
            op = "ds_read_b64_tr_b16"
        else:
            op = {1: "ds_read_b32", 2: "ds_read_b64", 4: "ds_read_b128"}[dst.n]
        o = f" offset:{off}" if off else ""
        self.raw(f"{op} {dst}, {addr}{o}", regs_of(addr), regs_of(dst), "ds_ld")
        t = self._tag(); self.lg.append(t); return t

    def ds_write(self, addr, src, off=0):
        assert 0 <= off <= 65535, off
        op = {1: "ds_write_b32", 2: "ds_write_b64", 4: "ds_write_b128"}[src.n]
        o = f" offset:{off}" if off else ""
        self.raw(f"{op} {addr}, {src}{o}", regs_of(addr, src), [], "ds_st")
        t = self._tag(); self.lg.append(t); return t

    def wait_lg(self, tag):
        if tag not in self.lg: return
        idx = self.lg.index(tag)
        n = len(self.lg) - idx - 1
        n = min(n, 15)
        self.waitcnt(lgkm=n)
        self.lg = self.lg[len(self.lg) - n:] if n else []

    def wait_lg_all(self):
        self.waitcnt(lgkm=0); self.lg = []

    def finalize(self):
        out = []
        pos = 0
        last_valu_w = {}
        last_trans_w = {}
        last_mfma_w = {}
        last_mfma_c = {}
        last_valu_sw = {}
        last_salu_m0 = -100
        last_store = {}
        MF = 8
        for ins in self.ins:
            k = ins.kind
            if k in ("comment", "label"):
                out.append(ins); continue
            need = 0

            def req(p, n):
                nonlocal need
                need = max(need, p + n + 1)
            isvalu = k in ("valu", "trans", "perm", "rfl")
            if k == "mfma":
                d, a, b, c = ins.extra
                for r in regs_of(a, b):
                    if r in last_valu_w: req(last_valu_w[r], 2)
                    if r in last_mfma_w: req(last_mfma_w[r][0], MF)
                if isinstance(c, Reg):
                    for r in c.regs():
                        if r in last_valu_w: req(last_valu_w[r], 2)
                        if r in last_mfma_w:
                            p, dd = last_mfma_w[r]
                            if dd.k == c.k and dd.i == c.i and dd.n == c.n: pass
                            else: req(p, 6)
                if not (isinstance(c, Reg) and c.k == d.k and c.i == d.i):
                    for r in d.regs():
                        if r in last_mfma_w: req(last_mfma_w[r][0], MF)
                        if r in last_valu_w: req(last_valu_w[r], 2)
            if isvalu:
                for r in ins.rd:
                    if r in last_mfma_w: req(last_mfma_w[r][0], MF)
                    if r in last_trans_w and k != "trans": req(last_trans_w[r], 1)
                    if r[0] == "s" and r in last_valu_sw: req(last_valu_sw[r], 2)
                    if k == "perm" and r in last_valu_w: req(last_valu_w[r], 2)
                    if k == "rfl" and r in last_valu_w: req(last_valu_w[r], 1)
                for r in ins.wr:
                    if r in last_mfma_w: req(last_mfma_w[r][0], MF)
                    if r in last_mfma_c: req(last_mfma_c[r], 3)
                    if r in last_store: req(last_store[r], 2)
            if k in ("vmem_ld", "vmem_st", "dma", "ds_ld", "ds_st"):
                for r in ins.rd:
                    if r in last_mfma_w: req(last_mfma_w[r][0], MF)
                    if r[0] == "s" and r in last_valu_sw: req(last_valu_sw[r], 5)
                    if r in last_trans_w: req(last_trans_w[r], 1)
                for r in ins.wr:
                    if r in last_mfma_w: req(last_mfma_w[r][0], MF)
                    if r in last_store: req(last_store[r], 1)
                if k == "dma": req(last_salu_m0, 1)
            if k in ("salu", "branch", "smem"):
                for r in ins.rd:
                    if r in last_valu_sw: req(last_valu_sw[r], 3)
            if k == "branch":
                for r, (p, dd) in last_mfma_w.items(): req(p, MF)
                for r, p in last_valu_w.items(): req(p, 2)
                for r, p in last_valu_sw.items(): req(p, 5)
                for r, p in last_mfma_c.items(): req(p, 3)
                for r, p in last_store.items(): req(p, 2)
                req(last_salu_m0, 1)
            if need > pos:
                gap = need - pos
                while gap > 0:
                    n = min(gap, 16)
                    out.append(Ins(f"s_nop {n - 1}", kind="nop", extra=n))
                    pos += n; gap -= n
            out.append(ins)
            if k == "mfma":
                d, a, b, c = ins.extra
                for r in d.regs():
                    last_mfma_w[r] = (pos, d)
                    last_valu_w.pop(r, None); last_trans_w.pop(r, None)
                if isinstance(c, Reg):
                    for r in c.regs(): last_mfma_c[r] = pos
            elif isvalu:
                for r in ins.wr:
                    if r[0] == "s":
                        last_valu_sw[r] = pos
                    else:
                        last_valu_w[r] = pos
                        last_mfma_w.pop(r, None)
                        if k == "trans": last_trans_w[r] = pos
                        else: last_trans_w.pop(r, None)
            elif k == "salu":
                for r in ins.wr:
                    last_valu_sw.pop(r, None)
                    if r == ("s", 124): last_salu_m0 = pos
            elif k in ("vmem_ld", "ds_ld"):
                for r in ins.wr:
                    last_valu_w.pop(r, None); last_mfma_w.pop(r, None); last_trans_w.pop(r, None)
            if k == "vmem_st" and ins.extra is not None and ins.extra.n >= 3:
                for r in ins.extra.regs(): last_store[r] = pos
            pos += ins.extra if k == "nop" else 1
        self.ins = out

    def text(self):
        lines = []
        for i in self.ins:
            if i.kind == "label": lines.append(i.text)
            else: lines.append("  " + i.text)
        return "\n".join(lines)

    def stats(self):
        from collections import Counter
        return Counter(i.kind for i in self.ins)
```

```python
import sys, math, struct
from asmgen import *


def f2u(x): return struct.unpack('<I', struct.pack('<f', x))[0]


LOG2E = 1.4426950408889634
EPS = 1e-6
CS = (20 ** -0.5) * LOG2E
NEGBIG = -1e30

OA_OFF = 0
PQ_OFF = 0x280000
KVG_OFF = 0x500000
OOB = 0x40000000

FULL = (1 << 64) - 1


class P:
    NG = 7
    SLOT = 5120
    L = 6
    BARS = None
    SIDE_GAP = 2
    L2 = 6


def lanemask(fn):
    m = 0
    for l in range(64):
        if fn(l): m |= 1 << l
    return m


def smask(a, sreg, m):
    a.s_mov(sreg[0], m & 0xFFFFFFFF)
    a.s_mov(sreg[1], (m >> 32) & 0xFFFFFFFF)


def mk_srd(a, srd, base, nbytes, add=None):
    if add is None:
        a.s_mov(srd[0], base[0])
        a.salu("s_and_b32", srd[1], base[1], 0xFFFF)
    else:
        a.salu("s_add_u32", srd[0], base[0], add)
        a.salu("s_addc_u32", srd[1], base[1], 0)
        a.salu("s_and_b32", srd[1], srd[1], 0xFFFF)
    a.s_mov(srd[2], nbytes)
    a.s_mov(srd[3], 0x00020000)


def dma_voffs(a, va, lane, rowfn_emit, pitch, extra_s):
    outs = []
    t0 = va.alloc(1); t1 = va.alloc(1); t2 = va.alloc(1); t3 = va.alloc(1)
    for j in range(5):
        o = va.alloc(1)
        a.valu("v_add_u32", t0, j * 64, lane)
        a.valu("v_mul_u32_u24", t1, 6554, t0)
        a.valu("v_lshrrev_b32", t1, 16, t1)
        a.valu("v_mul_u32_u24", t2, 10, t1)
        a.valu("v_sub_u32", t2, t0, t2)
        rowfn_emit(t1, t3, t0)
        a.valu("v_mul_u32_u24", t3, pitch, t3)
        a.valu("v_lshl_add_u32", o, t2, 4, t3)
        if 0 < j < 4:
            a.valu("v_subrev_u32", o, j * 1024, o)
        a.valu("v_add_u32", o, extra_s, o)
        outs.append(o)
    for t in (t0, t1, t2, t3): va.free(t)
    return outs


def k1_order(br):
    return [(ks, seg) for ks in range(20) for seg in range(3)]


def k1_table():
    rows = []
    for br in "AB":
        order = k1_order(br)
        for w in range(4):
            r = []
            for G in range(15):
                ks, seg = order[4 * G + w]
                r.append(ks * 122880 + seg * 1280)
            r.append(0)
            rows.append(r)
    return rows


sW, sRT, sHG, sBR = S(22), S(23), S(24), S(25)
sT0, sT1 = S(26), S(27)
srdX, srdW, srdO, srdKV, srdDBG = S(28, 4), S(32, 4), S(36, 4), S(40, 4), S(44, 4)
sM0B, sC40960 = S(48), S(49)
sPC = S(50, 2)
mG = [S(52, 2), S(54, 2), S(56, 2), S(58, 2)]
mL8, mLo8 = S(60, 2), S(62, 2)
sTAB = S(64, 16)
mHi32 = S(80, 2)
mJ = [S(82, 2), S(84, 2), S(86, 2), S(88, 2)]
mDiag, mJ0 = S(90, 2), S(92, 2)
sO = [S(94), S(95), S(96), S(97)]
sCS, sTK = S(98), S(99)
sTMP2 = S(100, 2)


def k1_prologue(a):
    a.s_cmp("s_cmp_ge_u32", S(2), 256)
    a.s_branch("s_cbranch_scc1", "L_k1_end")
    a.s_load(S(4, 16), S(0, 2), 0)
    a.s_load(S(20, 2), S(0, 2), 64)
    a.valu("v_lshrrev_b32", V(1), 6, V(0))
    a.readfirstlane(sW, V(1))
    a.salu("s_and_b32", sT0, S(2), 7)
    a.salu("s_lshr_b32", sT1, S(2), 3)
    a.salu("s_lshr_b32", sBR, sT0, 2)
    a.salu("s_and_b32", sRT, sT0, 1)
    a.salu("s_lshl_b32", sRT, sRT, 3)
    a.salu("s_and_b32", sHG, sT1, 7)
    a.salu("s_or_b32", sRT, sRT, sHG)
    a.salu("s_bfe_u32", sHG, sT0, 0x10001)
    a.salu("s_lshl_b32", sHG, sHG, 2)
    a.salu("s_lshr_b32", sT1, sT1, 3)
    a.salu("s_or_b32", sHG, sHG, sT1)
    a.raw(f"s_getpc_b64 {sPC}", [], sPC.regs(), "salu")
    a.label("L_k1_pc")
    a.raw(f"s_add_u32 {sPC[0]}, {sPC[0]}, k1_table-L_k1_pc", sPC.regs(), sPC.regs(), "salu")
    a.salu("s_addc_u32", sPC[1], sPC[1], 0)
    a.salu("s_lshl_b32", sT0, sBR, 2)
    a.salu("s_add_u32", sT0, sT0, sW)
    a.salu("s_lshl_b32", sT0, sT0, 6)
    a.raw(f"s_load_dwordx16 {sTAB}, {sPC}, {sT0}", sPC.regs() + sT0.regs(), sTAB.regs(), "smem")
    a.salu("s_mul_i32", sM0B, sW, P.SLOT)
    a.s_mov(sC40960, 40960)
    a.s_cmp("s_cmp_eq_u32", sBR, 1)
    a.s_branch("s_cbranch_scc1", "L_k1_B")


class Frag:
    pass


def k1_body(a, br):
    isA = br == "A"
    va = Alloc("v", 0, 256); aa = Alloc("a", 0, 256)
    v0 = va.alloc(1)
    lane = va.alloc(1)
    a.valu("v_and_b32", lane, 63, v0)
    vi = va.alloc(1); vg = va.alloc(1)
    a.valu("v_and_b32", vi, 15, lane)
    a.valu("v_lshrrev_b32", vg, 4, lane)
    xo = va.alloc(1)
    t0 = va.alloc(1); t1 = va.alloc(1)
    a.salu("s_lshl_b32", sT0, sRT, 7)
    a.salu("s_lshr_b32", sT1, sW, 1)
    a.salu("s_lshl_b32", sT1, sT1, 6)
    a.salu("s_add_u32", sT1, sT1, sT0)
    a.salu("s_and_b32", sTMP2[0], sW, 1)
    a.salu("s_add_u32", sT1, sT1, sTMP2[0])
    a.valu("v_lshl_add_u32", t0, vi, 1, sT1)
    a.valu("v_mul_u32_u24", t0, 1280, t0)
    a.valu("v_lshl_add_u32", xo, vg, 4, t0)
    if isA:
        xh = va.alloc(1)
        a.valu("v_and_b32", t0, 7, vi)
        a.valu("v_lshrrev_b32", t1, 3, vi)
        a.valu("v_lshl_add_u32", t0, t0, 1, t1)
        a.salu("s_sub_u32", sT0, sT0, 16)
        a.valu("v_add_u32", t0, sT0, t0)
        a.valu("v_max_i32", t0, 0, t0)
        a.valu("v_mul_u32_u24", t0, 1280, t0)
        a.valu("v_lshl_add_u32", xh, vg, 4, t0)
    a.salu("s_mul_i32", sT0, sHG, 160)

    def rowfn(rho, out, tmp):
        a.valu("v_and_b32", out, 0x13, rho)
        a.valu("v_and_b32", tmp, 4, rho)
        a.valu("v_lshl_add_u32", out, tmp, 1, out)
        a.valu("v_and_b32", tmp, 8, rho)
        a.valu("v_lshrrev_b32", tmp, 1, tmp)
        a.valu("v_add_u32", out, tmp, out)
    dvo = dma_voffs(a, va, lane, rowfn, 3840, sT0)
    a.waitcnt(lgkm=0)
    mk_srd(a, srdX, S(4, 2) if isA else S(10, 2), 2048 * 1280)
    mk_srd(a, srdW, S(6, 2) if isA else S(12, 2), 640 * 3840)

    nblk = 3 if isA else 2
    xf = [[aa.alloc(4, 4) for ks in range(20)] for b in range(nblk)]
    xtag = {}
    dtag = {}

    def xload(ks, b):
        def f():
            if b == 0: t = a.buf_load(xf[0][ks], xo, srdX, 0, 64 * ks)
            elif b == 1: t = a.buf_load(xf[1][ks], xo, srdX, sC40960, 64 * ks)
            else: t = a.buf_load(xf[2][ks], xh, srdX, 0, 64 * ks)
            xtag[(ks, b)] = t
        return f

    def dma(G, j):
        def f():
            if j == 0 or j == 4:
                a.salu("s_add_u32", M0, sM0B, (G % P.NG) * 4 * P.SLOT + (4096 if j == 4 else 0))
            t = a.buf_load_lds(dvo[j], srdW, sTAB[G], (j % 4) * 1024)
            dtag[G] = t
        return f

    order = k1_order(br)
    first_use_ks = {}
    for n, (ks, seg) in enumerate(order):
        first_use_ks.setdefault(ks, n)
    items = []
    for kp in range(10):
        need = min(first_use_ks[2 * kp], first_use_ks[2 * kp + 1])
        for b in range(nblk):
            for ks in (2 * kp, 2 * kp + 1):
                items.append((need, 0, "x", -1, xload(ks, b)))
    for G in range(15):
        for j in range(5):
            items.append((4 * G, 1, "d", G - P.NG + 2 if G >= P.NG else -1, dma(G, j)))
    items.sort(key=lambda t: (t[0], t[1]))
    state = {"bar": -1}

    VMCAP = 60 if isA else 54

    def side_emit(maxn=1):
        n = 0
        while n < maxn:
            pick = None
            for it in items:
                if it[3] <= state["bar"]:
                    pick = it; break
            if pick is None or len(a.vm) >= VMCAP: return n
            items.remove(pick)
            pick[4]()
            n += 1
        return n

    if not isA:
        mk_srd(a, srdDBG, S(18, 2), 256)
        vtk = va.alloc(1); vtko = va.alloc(1)
        a.v_mov(vtk, 1)
        a.valu("v_lshlrev_b32", vtko, 2, V(0))
        a.salu("s_lshl_b32", sT0, sHG, 2)
        a.v_cmp("v_cmp_eq_u32", VCC, 0, V(0))
        a.v_mov(vtko, OOB)
        a.v_mov(t0, sT0)
        a.v_cndmask(vtko, vtko, t0, VCC)
        tk_tag = a.buf_atomic_add_ret(vtk, vtko, srdDBG, 0, 0, " sc0 sc1")
    side_emit(1000)

    mk_srd(a, srdO, S(20, 2), 0x280000, OA_OFF if isA else PQ_OFF)
    rho0 = t0
    a.valu("v_lshrrev_b32", t0, 1, vg)
    a.valu("v_lshlrev_b32", t0, 4, t0)
    a.valu("v_and_b32", t1, 1, vg)
    a.valu("v_lshl_add_u32", t0, t1, 2, t0)
    a.valu("v_bfe_u32", t1, lane, 2, 2)
    a.valu("v_add_u32", t0, t1, t0)
    a.valu("v_mul_u32_u24", t0, 160, t0)
    a.valu("v_and_b32", t1, 3, lane)
    NSET = 3
    SETSPAN = 12 * P.SLOT
    bT = [va.alloc(1) for _ in range(NSET)]
    b4 = [va.alloc(1) for _ in range(NSET)]
    a.valu("v_lshl_add_u32", bT[0], t1, 3, t0)
    a.valu("v_mul_u32_u24", t1, 40, t1)
    a.valu("v_add3_u32", b4[0], t0, t1, 32)
    for k in range(1, NSET):
        a.valu("v_add_u32", bT[k], k * SETSPAN, bT[0])
        a.valu("v_add_u32", b4[k], k * SETSPAN, b4[0])
    if isA:
        bH = [va.alloc(1) for _ in range(NSET)]
        a.salu("s_mul_i32", sT0, sW, 40)
        for k in range(NSET):
            a.valu("v_add_u32", bH[k], sT0, bT[k])
    for h in range(4): smask(a, mG[h], lanemask(lambda l: (l >> 4) == h))
    smask(a, mL8, lanemask(lambda l: l & 8)); smask(a, mLo8, lanemask(lambda l: not (l & 8)))
    smask(a, mHi32, lanemask(lambda l: l >= 32))
    l16 = va.alloc(1); l8 = va.alloc(1)
    a.valu("v_lshlrev_b32", l16, 4, lane)
    a.valu("v_lshlrev_b32", l8, 3, lane)
    ones = va.alloc(4)
    for r in range(4): a.v_mov(ones[r], 0x3F803F80)
    if isA:
        a.s_mov(sCS, f2u(CS))
        biasX = [va.alloc(4), va.alloc(4)]; biasY = va.alloc(4)
        a.v_mov(t1, f2u(NEGBIG))
        a.salu("s_lshr_b32", sT0, sW, 1)
        a.salu("s_or_b32", sT0, sT0, sRT)
        for r in range(4):
            def d(l): return 4 * (l >> 4) + r - (l & 15)
            cur = lambda l: -7 <= d(l) <= 0
            prev = lambda l: d(l) >= 9
            mY = lanemask(lambda l: (l & 8) and cur(l))
            mX = lanemask(lambda l: not (l & 8) and (cur(l) or prev(l)))
            mX0 = lanemask(lambda l: not (l & 8) and cur(l))
            smask(a, sTMP2, mY); a.v_cndmask(biasY[r], t1, 0, sTMP2)
            smask(a, sTMP2, mX); a.v_cndmask(biasX[1][r], t1, 0, sTMP2)
            a.s_cmp("s_cmp_eq_u32", sT0, 0)
            a.salu("s_cselect_b32", sTMP2[0], mX0 & 0xFFFFFFFF, sTMP2[0], wr_scc=False)
            a.salu("s_cselect_b32", sTMP2[1], mX0 >> 32, sTMP2[1], wr_scc=False)
            a.v_cndmask(biasX[0][r], t1, 0, sTMP2)
        a.salu("s_lshl_b32", sT0, sRT, 2)
        a.salu("s_add_u32", sT0, sT0, sW)
        a.salu("s_mul_i32", sT0, sT0, 40960)
        a.salu("s_lshr_b32", sT1, sHG, 1)
        a.salu("s_mul_i32", sT1, sT1, 5120)
        a.salu("s_add_u32", sT0, sT0, sT1)
        a.salu("s_and_b32", sT1, sHG, 1)
        a.salu("s_lshl_b32", sTMP2[0], sT1, 11)
        a.salu("s_add_u32", sO[0], sT0, sTMP2[0])
        a.salu("s_add_u32", sO[1], sO[0], 20480)
        a.salu("s_lshl_b32", sTMP2[0], sT1, 3)
        a.salu("s_add_u32", sO[2], sT0, sTMP2[0])
        a.salu("s_add_u32", sO[2], sO[2], 4096)
        a.salu("s_add_u32", sO[3], sO[2], 20480)
    else:
        for h in range(4): smask(a, mJ[h], lanemask(lambda l: ((l & 15) >> 2) == h))
        smask(a, mDiag, lanemask(lambda l: ((l & 15) >> 2) == (l >> 4)))
        smask(a, mJ0, lanemask(lambda l: (l & 15) == 0))
        epsq = va.alloc(4)
        for r in range(4): a.v_mov(epsq[r], f2u(EPS))
        a.s_mov(sCS, f2u(LOG2E))
        a.salu("s_lshl_b32", sT0, sRT, 2)
        a.salu("s_add_u32", sT0, sT0, sW)
        a.salu("s_lshl_b32", sT0, sT0, 4)
        a.salu("s_add_u32", sT0, sT0, sHG)
        a.salu("s_mul_i32", sO[0], sT0, 2560)
        a.salu("s_add_u32", sO[1], sO[0], 8 * 2560)
        a.salu("s_mul_i32", sT0, sHG, 6720)
        a.salu("s_add_u32", sT0, sT0, KVG_OFF)
        mk_srd(a, srdKV, S(20, 2), 6720, sT0)

    acc = [[[va.alloc(4, 2) for b in range(2)] for t in range(5)] for seg in range(3)]
    if isA:
        hacc = {(seg, k): va.alloc(4, 2) for seg in (1, 2) for k in ("w", "4")}
    NB = P.L + 1
    wbuf = [va.alloc(4, 2) for _ in range(NB)]
    frags = []
    started = set()
    for n, (ks, seg) in enumerate(order):
        tr = (seg == 0) or (seg == 1 and isA)
        kinds = list(range(5)) + (["w"] if (isA and seg > 0) else [])
        for t in kinds:
            fr = Frag(); fr.n = n; fr.ks = ks; fr.seg = seg; fr.t = t; fr.tr = tr
            if t == "w":
                fr.m = [(hacc[(seg, "w")], 2)]
            else:
                fr.m = [(acc[seg][t][0], 0), (acc[seg][t][1], 1)]
                if t == 4 and isA and seg > 0: fr.m.append((hacc[(seg, "4")], 2))
            frags.append(fr)
    bars = P.BARS or list(range(15))
    opened = {"upto": -1}

    def hook_barrier(G):
        pass

    def open_group(G):
        if G <= opened["upto"]: return
        assert G in bars
        nxt = [b for b in bars if b > G]
        last = (nxt[0] if nxt else 15) - 1
        while last not in dtag:
            assert side_emit(1) == 1, "cannot issue"
        while any(it[2] == "d" and it[0] <= 4 * last for it in items):
            assert side_emit(1) == 1
        a.wait_vm(dtag[last])
        a.barrier()
        opened["upto"] = last
        state["bar"] = G
        if not isA:
            if G == bars[2]:
                a.wait_vm(tk_tag)
                a.readfirstlane(sTK, vtk)
                a.salu("s_or_b32", sTK, sTK, sW)
                a.s_cmp("s_cmp_lg_u32", sTK, 0)
                a.s_branch("s_cbranch_scc1", "L_k1_nozero")
                z = va.alloc(4, 2)
                for r in range(4): a.v_mov(z[r], 0)
                sv = list(a.vm)
                for n in range(7):
                    a.buf_store(z, l16, srdKV, 0 if n < 4 else S(26), (n % 4) * 1024, " sc0 sc1") if n != 4 else (
                        a.s_mov(S(26), 4096), a.buf_store(z, l16, srdKV, S(26), 0, " sc0 sc1"))
                a.vm = sv
                a.nop(1)
                va.free(z)
                a.label("L_k1_nozero")
            if G == bars[-1]:
                assert not items
                a.s_cmp("s_cmp_lg_u32", sTK, 0)
                a.s_branch("s_cbranch_scc1", "L_k1_noflag")
                sv = list(a.vm)
                a.waitcnt(vm=0)
                a.v_mov(vtk, 1)
                a.buf_store(vtk, vtko, srdDBG, 0, 64, " sc0 sc1")
                a.vm = sv
                a.label("L_k1_noflag")

    def read_half(f, half):
        fr = frags[f]
        if half == 0: open_group(fr.n >> 2)
        slot = fr.n % (4 * P.NG)
        k = slot // 12
        off = (slot % 12) * P.SLOT + half * 1280
        if fr.t == "w": base = bH[k]
        elif fr.t == 4: base = b4[k]
        else: base = bT[k]; off += 40 * fr.t
        buf = wbuf[f % NB]
        fr.tag = a.ds_read(buf[2 * half:2 * half + 2], base, off, tr=True)

    for f in range(P.L):
        read_half(f, 0); read_half(f, 1)
    cnt = 0
    for f, fr in enumerate(frags):
        a.wait_lg(fr.tag)
        buf = wbuf[f % NB]
        done = 0
        for k, (d, b) in enumerate(fr.m):
            while (fr.ks, b) not in xtag:
                assert side_emit(1) == 1
            a.wait_vm(xtag[(fr.ks, b)])
            key = (d.i,)
            if key in started: c = d
            else:
                started.add(key)
                c = epsq if (not isA and fr.seg < 2) else 0
            x = xf[b][fr.ks]
            if fr.tr: a.mfma(d, buf, x, c)
            else: a.mfma(d, x, buf, c)
            cnt += 1
            if f + P.L < len(frags):
                if done < 2:
                    read_half(f + P.L, done); done += 1
                if k == len(fr.m) - 1:
                    while done < 2:
                        read_half(f + P.L, done); done += 1
            if cnt % P.SIDE_GAP == 0: side_emit(1)
    assert not items
    for r in wbuf: va.free(r)
    for r in bT + b4 + dvo + [xo]: va.free(r)
    if isA:
        for r in bH + [xh]: va.free(r)

    env = dict(locals())
    if isA: k1_epi_A(a, env)
    else: k1_epi_B(a, env)
    print(f"; K1{br}: vgpr high {va.high}, agpr high {aa.high}", file=sys.stderr)


def pack2(a, dst, src):
    a.cvt_pk(dst[0], src[0], src[1]); a.cvt_pk(dst[1], src[2], src[3])


EXB = 1 * 4 * 5120
SETSZ = 5632


def k1_epi_A(a, e):
    va = e["va"]; acc = e["acc"]; hacc = e["hacc"]; l16 = e["l16"]; l8 = e["l8"]; lane = e["lane"]
    biasX = e["biasX"]; biasY = e["biasY"]; ones = e["ones"]; t0 = e["t0"]; t1 = e["t1"]
    KPOS = {0: 0, 4: 2, 1: 4, 2: 6, 3: 10}
    KOP = {0: 0, 1: 2, 2: 6, 3: 8}

    def packK(b, dst):
        for t in range(5): pack2(a, dst[KPOS[t]:KPOS[t] + 2], acc[1][t][b])
        pack2(a, dst[8:10], acc[1][4][b])

    aK = va.alloc(1); aV = va.alloc(1); aHK = va.alloc(1); aHV = va.alloc(1); rK = va.alloc(1); rV = va.alloc(1)
    a.salu("s_mul_i32", sT0, sW, SETSZ)
    a.valu("v_add_u32", aK, sT0, l16)
    a.valu("v_add_u32", aV, sT0, l8)
    a.salu("s_add_u32", sT0, sW, 1)
    a.salu("s_lshr_b32", sT0, sT0, 1)
    a.salu("s_lshl_b32", sT0, sT0, 10)
    a.salu("s_lshr_b32", sT1, sW, 1)
    a.salu("s_lshl_b32", sT1, sT1, 3)
    a.salu("s_add_u32", sT0, sT0, sT1)
    a.valu("v_add_u32", aHK, sT0, l16)
    a.salu("s_lshl_b32", sT0, sW, 9)
    a.valu("v_add_u32", aHV, sT0, l8)
    a.salu("s_sub_u32", sT0, sW, 2)
    a.s_cmp("s_cmp_ge_u32", sW, 2)
    a.salu("s_cselect_b32", sT0, sT0, 4, wr_scc=False)
    a.salu("s_mul_i32", sT0, sT0, SETSZ)
    a.s_cmp("s_cmp_eq_u32", sW, 0)
    a.salu("s_cselect_b32", sT1, 0xFFFFFF7F, -1, wr_scc=False)
    a.salu("s_cselect_b32", sTMP2[0], 0xFFFFFEFF, -1, wr_scc=False)
    a.valu("v_and_b32", rK, sT1, l16)
    a.valu("v_add_u32", rK, sT0, rK)
    a.valu("v_and_b32", rV, sTMP2[0], l8)
    a.valu("v_add_u32", rV, sT0, rV)

    Kc = [None, None]; KX = [None, None]; Vop = [None, None]; Qop = [None, None]
    HB = EXB + 4 * SETSZ
    Kc[1] = va.alloc(12, 2); packK(1, Kc[1])
    for m in range(3): a.ds_write(aK, Kc[1][4 * m:4 * m + 4], EXB + m * 1024)
    for t in range(5): va.free(acc[1][t][1])
    Vop[1] = va.alloc(20, 2)
    for t in range(5):
        pack2(a, Vop[1][4 * t + 2:4 * t + 4], acc[2][t][1])
        a.ds_write(aV, Vop[1][4 * t + 2:4 * t + 4], EXB + 3072 + t * 512)
        va.free(acc[2][t][1])
    hp = va.alloc(8, 2)
    pack2(a, hp[0:2], hacc[(1, "w")]); a.ds_write(aHK, hp[0:2], HB)
    pack2(a, hp[2:4], hacc[(1, "4")]); a.ds_write(l16, hp[2:4], HB + 8); a.ds_write(l16, hp[2:4], HB + 2048)
    pack2(a, hp[4:6], hacc[(2, "w")]); a.ds_write(aHV, hp[4:6], HB + 3072)
    pack2(a, hp[6:8], hacc[(2, "4")]); a.ds_write(l8, hp[6:8], HB + 3072 + 2048)
    for k in hacc.values(): va.free(k)
    Kc[0] = va.alloc(12, 2); packK(0, Kc[0])
    KX[0] = va.alloc(12, 2); packK(0, KX[0])
    for t in range(5): va.free(acc[1][t][0])
    Vop[0] = va.alloc(20, 2)
    for t in range(5):
        pack2(a, Vop[0][4 * t + 2:4 * t + 4], acc[2][t][0])
        pack2(a, Vop[0][4 * t:4 * t + 2], acc[2][t][0])
        va.free(acc[2][t][0])
    a.wait_lg_all()
    a.barrier()
    va.free(hp)
    a.set_exec(mL8)
    for m in range(3): tagK = a.ds_read(KX[0][4 * m:4 * m + 4], rK, EXB + m * 1024)
    a.set_exec(mHi32)
    for t in range(5): tagV = a.ds_read(Vop[0][4 * t:4 * t + 2], rV, EXB + 3072 + t * 512)
    a.set_exec(-1)
    KX[1] = va.alloc(12, 2)
    for r in range(12): a.v_cndmask(KX[1][r], Kc[1][r], Kc[0][r], mL8)
    for t in range(5):
        for r in range(2):
            a.v_cndmask(Vop[1][4 * t + r], Vop[1][4 * t + 2 + r], Vop[0][4 * t + 2 + r], mHi32)
    for b in (1, 0):
        Qop[b] = va.alloc(16, 2)
        q4 = va.alloc(2, 2)
        pack2(a, q4, acc[0][4][b])
        for h in range(4):
            main = 4 * h + (0 if h % 2 == 0 else 2)
            m4 = 4 * h + (2 if h % 2 == 0 else 0)
            pack2(a, Qop[b][main:main + 2], acc[0][h][b])
            for r in range(2): a.v_cndmask(Qop[b][m4 + r], 0, q4[r], mG[h])
        va.free(q4)
        for t in range(5): va.free(acc[0][t][b])
    SX = {}; SY = {}
    for b in (1, 0):
        if b == 0: a.wait_lg(tagK)
        for h in range(4):
            SX[b, h] = va.alloc(4, 2); SY[b, h] = va.alloc(4, 2)
            a.mfma(SX[b, h], KX[b][KOP[h]:KOP[h] + 4], Qop[b][4 * h:4 * h + 4], biasX[b])
            a.mfma(SY[b, h], Kc[b][KOP[h]:KOP[h] + 4], Qop[b][4 * h:4 * h + 4], biasY)
    Pop = {}
    for b in (1, 0):
        for h in range(4):
            Pop[b, h] = va.alloc(4, 2)
            for r in range(4): a.v_mov(Pop[b, h][r], 0)
    for b in (1, 0):
        va.free(KX[b]); va.free(Kc[b]); va.free(Qop[b])
    m = {}
    for b in (1, 0):
        for h in range(4):
            for r in range(4): a.valu("v_max_f32", SX[b, h][r], SX[b, h][r], SY[b, h][r])
            m[b, h] = va.alloc(1)
            a.valu("v_max3_f32", m[b, h], SX[b, h][0], SX[b, h][1], SX[b, h][2])
            a.valu("v_max_f32", m[b, h], m[b, h], SX[b, h][3])
            va.free(SY[b, h])
    for b in (1, 0):
        a.permswap(32, m[b, 0], m[b, 2]); a.permswap(32, m[b, 1], m[b, 3])
    for b in (1, 0):
        a.valu("v_max_f32", m[b, 0], m[b, 0], m[b, 2]); a.valu("v_max_f32", m[b, 1], m[b, 1], m[b, 3])
    for b in (1, 0): a.permswap(16, m[b, 0], m[b, 1])
    for b in (1, 0): a.valu("v_max_f32", m[b, 0], m[b, 0], m[b, 1])
    for b in (1, 0):
        a.valu("v_mul_f32_e64", m[b, 1], Neg(m[b, 0]), sCS)
        a.valu("v_mul_f32_e64", m[b, 0], Neg(m[b, 0]), sCS)
    for b in (1, 0): a.permswap(16, m[b, 0], m[b, 1])
    for b in (1, 0):
        a.v_mov(m[b, 2], m[b, 0]); a.v_mov(m[b, 3], m[b, 1])
    for b in (1, 0):
        a.permswap(32, m[b, 0], m[b, 2]); a.permswap(32, m[b, 1], m[b, 3])
    for b in (1, 0):
        for h in range(4):
            for r in range(4): a.valu("v_fma_f32", SX[b, h][r], SX[b, h][r], sCS, m[b, h])
            for r in range(4): a.exp2(SX[b, h][r], SX[b, h][r])
            va.free(m[b, h])
        a.set_exec(mLo8)
        for h in range(4): pack2(a, Pop[b, h][0:2], SX[b, h])
        a.set_exec(mL8)
        for h in range(4): pack2(a, Pop[b, h][2:4], SX[b, h])
        a.set_exec(-1)
        for h in range(4): va.free(SX[b, h])
    SUM = {}; O = {}; O4 = {}
    for b in (1, 0):
        if b == 0: a.wait_lg(tagV)
        for h in range(4):
            SUM[b, h] = va.alloc(4, 2); O[b, h] = va.alloc(4, 2); O4[b, h] = va.alloc(4, 2)
            a.mfma(SUM[b, h], ones, Pop[b, h], 0)
            a.mfma(O[b, h], Vop[b][4 * h:4 * h + 4], Pop[b, h], 0)
            a.mfma(O4[b, h], Vop[b][16:20], Pop[b, h], 0)
    for b in (1, 0):
        E4 = va.alloc(4, 2); out = va.alloc(10, 2)
        for h in range(4): a.valu("v_rcp_f32", SUM[b, h][0], SUM[b, h][0])
        for h in range(4):
            for r in range(4): a.valu("v_mul_f32", O[b, h][r], O[b, h][r], SUM[b, h][0])
            pack2(a, out[2 * h:2 * h + 2], O[b, h])
        for h in range(4):
            a.set_exec(mG[h])
            for r in range(4): a.valu("v_mul_f32", E4[r], O4[b, h][r], SUM[b, h][0])
        a.set_exec(-1)
        pack2(a, out[8:10], E4)
        a.buf_store(out[0:4], l16, srdO, sO[b], 0)
        a.buf_store(out[4:8], l16, srdO, sO[b], 1024)
        a.buf_store(out[8:10], l16, srdO, sO[2 + b], 0)


def phi(a, x, tmp, vC):
    a.valu("v_fma_f32", tmp, x, sCS, vC)
    a.exp2(tmp, tmp, clamp=True)
    a.valu("v_max_f32", x, f2u(EPS), x)
    a.valu("v_add_f32", x, x, tmp)


def phi_tile(a, x4, tmp4, vC):
    for r in range(4): a.valu("v_fma_f32", tmp4[r], x4[r], sCS, vC)
    for r in range(4): a.exp2(tmp4[r], tmp4[r], clamp=True)
    for r in range(4): a.valu("v_max_f32", x4[r], f2u(EPS), x4[r])
    for r in range(4): a.valu("v_add_f32", x4[r], x4[r], tmp4[r])


def k1_epi_B(a, e):
    va = e["va"]; acc = e["acc"]; l16 = e["l16"]; l8 = e["l8"]; lane = e["lane"]; vi = e["vi"]; vg = e["vg"]
    ones = e["ones"]; t0 = e["t0"]; t1 = e["t1"]; vtk = e["vtk"]; vtko = e["vtko"]
    vC = va.alloc(1)
    a.v_mov(vC, f2u(-EPS * LOG2E))
    tmp = va.alloc(4, 2)
    vfo = va.alloc(1); vfl = va.alloc(1)
    a.salu("s_lshl_b32", sT0, sHG, 2)
    a.v_mov(vfo, sT0)
    ftag = a.buf_load(vfl, vfo, srdDBG, 0, 64, " sc0 sc1")
    aM = va.alloc(1); aJ = va.alloc(1); aG = va.alloc(1); aD = va.alloc(1); aZ = va.alloc(1); aZ4 = va.alloc(1)
    a.salu("s_mul_i32", sT0, sW, 6720)
    a.valu("v_mul_u32_u24", t0, 80, vi)
    a.valu("v_lshl_add_u32", aM, vg, 4, t0)
    a.valu("v_add_u32", aM, sT0, aM)
    a.valu("v_mul_u32_u24", t1, 1680, vg)
    a.valu("v_add3_u32", aG, t0, t1, sT0)
    a.valu("v_add_u32", aZ4, sT0, t1)
    a.valu("v_and_b32", t0, 3, vi)
    a.valu("v_mul_u32_u24", t0, 80, t0)
    a.valu("v_add3_u32", aD, t0, t1, sT0)
    a.valu("v_lshrrev_b32", t1, 2, vi)
    a.valu("v_mul_u32_u24", t1, 1680, t1)
    a.valu("v_add3_u32", aJ, t0, t1, sT0)
    a.valu("v_lshl_add_u32", aJ, vg, 4, aJ)
    a.valu("v_lshlrev_b32", aZ, 4, vg)
    a.valu("v_add_u32", aZ, sT0, aZ)
    Kop = []; Vop = []
    for t in range(5):
        v = va.alloc(4, 2)
        for b in range(2):
            pack2(a, v[2 * b:2 * b + 2], acc[2][t][b]); va.free(acc[2][t][b])
        Vop.append(v)
    for t in range(5):
        k = va.alloc(4, 2)
        for b in range(2):
            phi_tile(a, acc[1][t][b], tmp, vC)
            pack2(a, k[2 * b:2 * b + 2], acc[1][t][b]); va.free(acc[1][t][b])
        Kop.append(k)
    D = {}
    def mm(name, A_, B_):
        D[name] = va.alloc(4, 2); a.mfma(D[name], A_, B_, 0)
    for h in range(4): mm(("m", h), Kop[h], Vop[h])
    for h in range(4): mm(("j", h), Kop[h], Vop[4])
    for h in range(4): mm(("g", h), Kop[4], Vop[h])
    mm("d", Kop[4], Vop[4])
    for h in range(4): mm(("z", h), Kop[h], ones)
    mm("z4", Kop[4], ones)
    for h in range(4): a.ds_write(aM, D[("m", h)], EXB + h * 1680)
    for h in range(4):
        a.set_exec(mJ[h]); a.ds_write(aJ, D[("j", h)], EXB + 1280)
    for h in range(4):
        a.set_exec(mG[h]); a.ds_write(aG, D[("g", h)], EXB + 64)
    a.set_exec(mDiag); a.ds_write(aD, D["d"], EXB + 1280 + 64)
    a.set_exec(mJ0)
    for h in range(4): a.ds_write(aZ, D[("z", h)], EXB + h * 1680 + 1600)
    a.ds_write(aZ4, D["z4"], EXB + 1664)
    a.set_exec(-1)
    a.wait_vm(ftag)
    a.s_mov(sT1, 0)
    a.label("L_k1_spin")
    a.readfirstlane(sT0, vfl)
    a.s_cmp("s_cmp_lg_u32", sT0, 0)
    a.s_branch("s_cbranch_scc1", "L_k1_spin_done")
    a.salu("s_add_u32", sT1, sT1, 1)
    a.s_cmp("s_cmp_gt_u32", sT1, 200000)
    a.s_branch("s_cbranch_scc1", "L_k1_spin_done")
    a.raw("s_sleep 2")
    a.buf_load(vfl, vfo, srdDBG, 0, 64, " sc0 sc1")
    a.wait_vm_all()
    a.s_branch("s_branch", "L_k1_spin")
    a.label("L_k1_spin_done")
    a.wait_lg_all()
    a.barrier()
    for d in D.values(): va.free(d)
    for r in Kop + Vop: va.free(r)
    t4 = va.alloc(1)
    a.valu("v_lshlrev_b32", t4, 2, V(0))
    part = [[va.alloc(1) for w in range(4)] for n in range(7)]
    tags = []
    for n in range(7):
        for w in range(4): tg = a.ds_read(part[n][w], t4, EXB + w * 6720 + n * 1024)
        tags.append(tg)
        if n >= 2:
            m = n - 2
            a.wait_lg(tags[m]); sum_add(a, part[m], t4, m)
    for m in (5, 6):
        a.wait_lg(tags[m]); sum_add(a, part[m], t4, m)
    for b in range(2):
        out = va.alloc(10, 2)
        pos = {0: 0, 4: 2, 1: 4, 2: 6, 3: 8}
        for t in (0, 4, 1, 2, 3):
            phi_tile(a, acc[0][t][b], tmp, vC)
            pack2(a, out[pos[t]:pos[t] + 2], acc[0][t][b])
            if t == 4: a.buf_store(out[0:4], l16, srdO, sO[b], 0)
            if t == 2: a.buf_store(out[4:8], l16, srdO, sO[b], 1024)
            if t == 3: a.buf_store(out[8:10], l8, srdO, sO[b], 2048)


def sum_add(a, p, t4, n):
    a.valu("v_add_f32", p[0], p[0], p[1])
    a.valu("v_add_f32", p[2], p[2], p[3])
    a.valu("v_add_f32", p[0], p[0], p[2])
    if n == 4: a.s_mov(sT0, 4096)
    a.buf_atomic_add_f32(p[0], t4, srdKV, 0 if n < 4 else sT0, (n % 4) * 1024)


sCT = S(24)
srdWO, srdI, srdOUT = S(28, 4), S(32, 4), S(36, 4)
sQ = [S(64 + i) for i in range(12)]
sD = [S(76 + i) for i in range(5)]
KVL = 102400
mLo32 = S(82, 2)
m16 = S(84, 2)
mR0, mR1, mR2, mR3 = S(86, 2), S(88, 2), S(90, 2), S(92, 2)


def k2_prologue(a):
    a.s_cmp("s_cmp_ge_u32", S(2), 256)
    a.s_branch("s_cbranch_scc1", "L_k2_end")
    a.s_load(S(4, 16), S(0, 2), 0)
    a.s_load(S(20, 2), S(0, 2), 64)
    a.valu("v_lshrrev_b32", V(1), 6, V(0))
    a.readfirstlane(sW, V(1))
    a.salu("s_and_b32", sT0, S(2), 7)
    a.salu("s_lshr_b32", sT1, S(2), 3)
    a.salu("s_lshr_b32", sBR, sT0, 2)
    a.salu("s_and_b32", sRT, sT0, 3)
    a.salu("s_lshl_b32", sRT, sRT, 2)
    a.salu("s_and_b32", sCT, sT1, 3)
    a.salu("s_or_b32", sRT, sRT, sCT)
    a.salu("s_lshr_b32", sCT, sT1, 2)
    a.s_cmp("s_cmp_eq_u32", sBR, 1)
    a.s_branch("s_cbranch_scc1", "L_k2_B")


def rowAB(i):
    if i < 4: return (0, 16 + i)
    if i < 8: return (1, 12 + i)
    if i in (8, 12): return (0, 20)
    if i in (9, 13): return (1, 20)
    return None


def rowCD(i):
    if 8 <= i < 12: return (2, 8 + i)
    if i >= 12: return (3, 4 + i)
    if i in (0, 4): return (2, 20)
    if i in (1, 5): return (3, 20)
    return None


def k2_body(a, br):
    isA = br == "A"
    va = Alloc("v", 0, 256); aa = Alloc("a", 0, 256)
    v0 = va.alloc(1)
    lane = va.alloc(1); vi = va.alloc(1); vg = va.alloc(1)
    a.valu("v_and_b32", lane, 63, v0)
    a.valu("v_and_b32", vi, 15, lane)
    a.valu("v_lshrrev_b32", vg, 4, lane)
    l16 = va.alloc(1); l8 = va.alloc(1)
    a.valu("v_lshlrev_b32", l16, 4, lane)
    a.valu("v_lshlrev_b32", l8, 3, lane)
    t0 = va.alloc(1); t1 = va.alloc(1)
    a.salu("s_mul_i32", sT0, sCT, 160)

    def rowfn0(rho, out, tmp):
        a.valu("v_lshrrev_b32", tmp, 4, rho)
        a.valu("v_mul_u32_u24", tmp, 20, tmp)
        a.valu("v_and_b32", out, 15, rho)
        a.valu("v_add_u32", out, tmp, out)

    def rowfn1(rho, out, tmp):
        a.valu("v_lshrrev_b32", tmp, 2, rho)
        a.valu("v_mul_u32_u24", tmp, 20, tmp)
        a.valu("v_and_b32", out, 3, rho)
        a.valu("v_add3_u32", out, tmp, out, 16)
    dv0 = dma_voffs(a, va, lane, rowfn0, 1280, sT0)
    dv1 = dma_voffs(a, va, lane, rowfn1, 1280, sT0)
    a.salu("s_mul_i32", sT0, sW, 8 * 25600)
    for v in range(4): a.salu("s_add_u32", sD[v], sT0, 2 * v * 25600)
    a.s_mov(sD[4], sT0)
    a.salu("s_mul_i32", sM0B, sW, 5 * 5120)
    for q in range(11): a.s_mov(sQ[q], q * 4096)
    a.salu("s_lshl_b32", sT1, sRT, 2)
    a.salu("s_add_u32", sT1, sT1, sW)
    a.salu("s_mul_i32", sT1, sT1, 40960)
    a.salu("s_add_u32", sT1, sT1, OA_OFF if isA else PQ_OFF)
    if not isA:
        oM = va.alloc(1); o4 = va.alloc(1); oAB = va.alloc(1); oCD = va.alloc(1); oH = va.alloc(1)
        a.valu("v_mul_u32_u24", t0, 80, vi)
        a.valu("v_lshl_add_u32", oM, vg, 4, t0)
        a.valu("v_mul_u32_u24", t1, 1680, vg)
        a.valu("v_add3_u32", o4, t0, t1, 64)
        def build(dst, fn):
            a.v_mov(dst, OOB)
            vals = {}
            for l in range(64):
                x = fn(l)
                if x is not None: vals.setdefault(x, []).append(l)
            for x, ls in vals.items():
                mk = 0
                for l in ls: mk |= 1 << l
                smask(a, sTMP2, mk)
                a.v_mov(t0, x)
                a.v_cndmask(dst, dst, t0, sTMP2)
        def offrow(rf):
            def fn(l):
                r = rf(l & 15)
                return None if r is None else r[0] * 1680 + r[1] * 80
            return fn
        build(oAB, offrow(rowAB)); build(oCD, offrow(rowCD))
        smask(a, sTMP2, lanemask(lambda l: (l >> 4) < 2 and rowAB(l & 15) is not None and rowAB(l & 15)[0] == (l >> 4)))
        a.v_mov(oH, OOB)
        a.v_cndmask(oH, oH, oAB, sTMP2)
        smask(a, sTMP2, lanemask(lambda l: (l >> 4) >= 2 and rowCD(l & 15) is not None and rowCD(l & 15)[0] == (l >> 4)))
        a.v_cndmask(oH, oH, oCD, sTMP2)
        a.valu("v_add_u32", oH, 64, oH)
        a.valu("v_lshl_add_u32", oAB, vg, 4, oAB)
        a.valu("v_lshl_add_u32", oCD, vg, 4, oCD)
    a.waitcnt(lgkm=0)
    mk_srd(a, srdWO, S(8, 2) if isA else S(14, 2), 640 * 1280)
    mk_srd(a, srdI, S(20, 2), 40960, sT1)
    dtag = {}

    def dma(v):
        for j in range(5):
            if j % 4 == 0: a.salu("s_add_u32", M0, sM0B, v * 5120 + j * 1024)
            dtag[v] = a.buf_load_lds((dv0 if v < 4 else dv1)[j], srdWO, sD[v], (j % 4) * 1024)

    acc = [[va.alloc(4, 2) for t in range(5)] for b in range(2)]
    NB = P.L2 + 1
    wbuf = [va.alloc(4, 2) for _ in range(NB)]
    bW = [va.alloc(1), va.alloc(1)]

    def late_setup():
        a.valu("v_lshrrev_b32", t0, 2, lane)
        a.valu("v_mul_u32_u24", t0, 160, t0)
        a.valu("v_and_b32", t1, 3, lane)
        a.valu("v_mul_u32_u24", t1, 40, t1)
        a.valu("v_add_u32", bW[0], t0, t1)
        a.valu("v_add_u32", bW[1], 10 * 5120, bW[0])
        mk_srd(a, srdOUT, S(16, 2), 2048 * 2560)

    started = set()

    class GemmStream:
        def __init__(self, kslist, ofrag, pre_read=None, pre_mfma=None):
            self.fr = [(ks, t) for ks in kslist for t in range(5)]
            self.ofrag = ofrag; self.pre_read = pre_read; self.pre_mfma = pre_mfma
            self.tags = {}
            self.rp = 0

        def read_half(self):
            f, half = divmod(self.rp, 2)
            if f >= len(self.fr): return
            ks, t = self.fr[f]
            if half == 0 and t == 0 and self.pre_read: self.pre_read(ks)
            k = ks // 10
            off = (ks % 10) * 5120 + half * 2560 + 8 * t
            self.tags[f] = a.ds_read(wbuf[f % NB][2 * half:2 * half + 2], bW[k], off, tr=True)
            self.rp += 1

        def prime(self):
            while self.rp < 2 * P.L2: self.read_half()

        def run(self, f0, f1, between=None):
            for f in range(f0, f1):
                ks, t = self.fr[f]
                a.wait_lg(self.tags[f])
                for b in range(2):
                    if t == 0 and self.pre_mfma: self.pre_mfma(ks, b)
                    d = acc[b][t]
                    c = d if d.i in started else 0
                    started.add(d.i)
                    a.mfma(d, wbuf[f % NB], self.ofrag(ks, b), c)
                    self.read_half()
                    if between: between()

    if isA:
        of = [[aa.alloc(4, 4) for ks in range(20)] for b in range(2)]
        otag = {}
        kso = [5 * u + v for v in range(5) for u in range(4)]

        def oload(ks, b):
            o = b * 20480 + ks * 1024
            otag[(ks, b)] = a.buf_load(of[b][ks], l16, srdI, sQ[o // 4096], o % 4096)
        for v in range(5):
            dma(v)
            if v < 4:
                for u in range(4):
                    for b in range(2): oload(5 * u + v, b)
        late_setup()
        opened = set()

        def pre_read(ks):
            v = ks % 5
            if v not in opened:
                opened.add(v)
                a.wait_vm(dtag[v]); a.barrier()
                if v == 1:
                    for u in range(4):
                        for b in range(2): oload(5 * u + 4, b)

        def pre_mfma(ks, b): a.wait_vm(otag[(ks, b)])
        g = GemmStream(kso, lambda ks, b: of[b][ks], pre_read, pre_mfma)
        g.prime(); g.run(0, 100)
    else:
        mk_srd(a, srdKV, S(20, 2), 8 * 6720, KVG_OFF)
        kvr = {}
        kvtag = {}
        a.salu("s_mul_i32", sT0, sW, 6720)
        sK = [S(94), S(95), S(96), S(97)]
        a.s_mov(sK[0], sT0); a.salu("s_add_u32", sK[1], sT0, 3360)
        a.salu("s_add_u32", sK[2], sT0, 4 * 6720); a.salu("s_add_u32", sK[3], sT0, 4 * 6720 + 3360)
        for hh in range(2):
            for name in ("m0", "m1", "m2", "m3", "4", "AB", "CD", "H"):
                r = va.alloc(4, 2); kvr[hh, name] = r
                if name[0] == "m":
                    h = int(name[1])
                    kvtag[hh, name] = a.buf_load(r, oM, srdKV, sK[2 * hh + (h >> 1)], (h & 1) * 1680)
                else:
                    o = {"4": o4, "AB": oAB, "CD": oCD, "H": oH}[name]
                    kvtag[hh, name] = a.buf_load(r, o, srdKV, sK[2 * hh], 0)
        pq = [[aa.alloc(12, 4) for hg in range(8)] for b in range(2)]
        qtag = {}

        def qload(hg, b):
            o = b * 20480 + hg * 2560
            r = pq[b][hg]
            for (dst, vo, oo) in ((r[0:4], l16, o), (r[4:8], l16, o + 1024), (r[10:12], l8, o + 2048)):
                qtag[(hg, b)] = a.buf_load(dst, vo, srdI, sQ[oo // 4096], oo % 4096)
        for hg in range(2):
            for b in range(2): qload(hg, b)
        for v in range(5): dma(v)
        late_setup()
        for h in range(4): smask(a, mG[h], lanemask(lambda l: (l >> 4) == h))
        smask(a, mLo32, lanemask(lambda l: l < 32))
        smask(a, m16, lanemask(lambda l: l & 16))
        smask(a, mR0, lanemask(lambda l: rowAB(l & 15) is not None and rowAB(l & 15)[0] == 0))
        smask(a, mR2, lanemask(lambda l: rowCD(l & 15) is not None and rowCD(l & 15)[0] == 2))
        cAB = va.alloc(4, 2); cCD = va.alloc(4, 2)
        a.v_mov(t0, f2u(EPS))
        for r in range(2):
            a.v_cndmask(cAB[r], t0, 0, mLo32); a.v_cndmask(cCD[r], 0, t0, mLo32)
        for r in range(2, 4):
            a.v_mov(cAB[r], 0); a.v_mov(cCD[r], 0)
        wa16 = va.alloc(1); wa8 = va.alloc(1)
        a.salu("s_mul_i32", sT0, sW, 7168)
        a.salu("s_add_u32", sT0, sT0, KVL)
        a.valu("v_add_u32", wa16, sT0, l16)
        a.valu("v_add_u32", wa8, sT0, l8)
        for hh in range(2):
            img = va.alloc(28, 2)
            p2 = va.alloc(2, 2)
            base = hh * 4 * 7168
            a.wait_vm(kvtag[hh, "4"])
            pack2(a, p2, kvr[hh, "4"])
            for h in range(4):
                mainp = 4 * h + (0 if h % 2 == 0 else 2); t4p = 4 * h + (2 if h % 2 == 0 else 0)
                pack2(a, img[mainp:mainp + 2], kvr[hh, f"m{h}"])
                for r in range(2): a.v_cndmask(img[t4p + r], 0, p2[r], mG[h])
                a.ds_write(wa16, img[4 * h:4 * h + 4], base + h * 1024)
            a.wait_vm(kvtag[hh, "H"])
            pack2(a, p2, kvr[hh, "AB"])
            for r in range(2):
                a.v_cndmask(img[16 + r], 0, p2[r], mR0)
                a.v_cndmask(img[24 + r], p2[r], 0, mR0)
            pack2(a, p2, kvr[hh, "CD"])
            for r in range(2):
                a.v_cndmask(img[20 + r], 0, p2[r], mR2)
                a.v_cndmask(img[26 + r], p2[r], 0, mR2)
            pack2(a, p2, kvr[hh, "H"])
            for r in range(2):
                a.v_cndmask(img[18 + r], 0, p2[r], mLo32)
                a.v_cndmask(img[22 + r], p2[r], 0, mLo32)
            a.ds_write(wa16, img[16:20], base + 4096)
            a.ds_write(wa16, img[20:24], base + 5120)
            a.ds_write(wa8, img[24:26], base + 6144)
            a.ds_write(wa8, img[26:28], base + 6656)
            for name in ("m0", "m1", "m2", "m3", "4", "AB", "CD", "H"): va.free(kvr[hh, name])
            va.free(p2)
            if hh == 0: img0 = img
            for hg in range(2 + 2 * hh, 4 + 2 * hh):
                for b in range(2): qload(hg, b)
        a.wait_lg_all()
        a.wait_vm(dtag[4])
        a.barrier()
        va.free(img0); va.free(img)
        for hg in range(6, 8):
            for b in range(2): qload(hg, b)
        for r in (oM, o4, oAB, oCD, oH, wa16, wa8): va.free(r)
        ra16 = va.alloc(1); ra8 = va.alloc(1)
        a.valu("v_add_u32", ra16, KVL, l16)
        a.valu("v_add_u32", ra8, KVL, l8)
        for r in dv0 + dv1: va.free(r)
        kop = [aa.alloc(32, 4) for _ in range(2)]
        for s_ in range(2):
            for r in (24, 25, 28, 29): a.valu("v_accvgpr_write_b32", kop[s_][r], 0)
        of = [[[va.alloc(4, 2) for v in range(5)] for b in range(2)] for _ in range(2)]
        T = [va.alloc(24, 2) for b in range(2)]
        tmpv = [va.alloc(10, 2) for b in range(2)]
        ktag = {}

        def kread(hg):
            k = kop[hg & 1]
            for m in range(6): a.ds_read(k[4 * m:4 * m + 4], ra16, hg * 7168 + m * 1024)
            a.ds_read(k[26:28], ra8, hg * 7168 + 6144)
            ktag[hg] = a.ds_read(k[30:32], ra8, hg * 7168 + 6656)

        QOP = {0: 0, 1: 2, 2: 6, 3: 8}

        def omfma(hg, b):
            k = kop[hg & 1]; q = pq[b][hg]; t = T[b]
            a.wait_vm(qtag[(hg, b)])
            a.acc_mov(q[8], q[2]); a.acc_mov(q[9], q[3])
            a.wait_lg(ktag[hg])
            a.mfma(t[16:20], k[16:20], q[0:4], cAB)
            a.mfma(t[0:4], k[0:4], q[0:4], 0)
            a.mfma(t[16:20], k[24:28], q[2:6], t[16:20])
            a.mfma(t[20:24], k[20:24], q[6:10], cCD)
            a.mfma(t[4:8], k[4:8], q[2:6], 0)
            a.mfma(t[20:24], k[28:32], q[8:12], t[20:24])
            a.mfma(t[8:12], k[8:12], q[6:10], 0)
            a.mfma(t[12:16], k[12:16], q[8:12], 0)

        def onorm(hg, b):
            t = T[b]; x = tmpv[b]; u = hg >> 1; o = of[u & 1][b]
            AB = t[16:20]; CD = t[20:24]
            r02, r13, c02, c13, X, Y = x[0], x[1], x[2], x[3], x[4], x[5]
            E4 = x[6:10]
            a.v_cndmask(r02, AB[0], CD[0], mLo32)
            a.v_cndmask(r13, AB[1], CD[1], mLo32)
            a.valu("v_rcp_f32", r02, r02); a.valu("v_rcp_f32", r13, r13)
            for r in range(4): a.v_cndmask(E4[r], CD[r], AB[r], mLo32)
            a.v_mov(c02, r02); a.v_mov(c13, r13)
            a.permswap(32, r02, c02); a.permswap(32, r13, c13)
            rc = [c02, c13, r02, r13]
            a.v_cndmask(X, rc[2], rc[0], mLo32)
            a.v_cndmask(Y, rc[3], rc[1], mLo32)
            a.v_cndmask(X, X, Y, m16)
            for h in range(4):
                for r in range(4): a.valu("v_mul_f32", t[4 * h + r], t[4 * h + r], rc[h])
                dst = o[2 * (hg & 1) + (h >> 1)]
                pack2(a, dst[2 * (h & 1):2 * (h & 1) + 2], t[4 * h:4 * h + 4])
            for r in range(4): a.valu("v_mul_f32", E4[r], E4[r], X)
            pack2(a, o[4][2 * (hg & 1):2 * (hg & 1) + 2], E4)

        g = GemmStream(list(range(20)), lambda ks, b: of[(ks // 5) & 1][b][ks % 5])
        kread(0)
        for u in range(4):
            for hg in (2 * u, 2 * u + 1):
                if hg + 1 < 8: kread(hg + 1)
                for b in range(2): omfma(hg, b)
                for b in range(2): onorm(hg, b)
            if u == 0: g.prime()
            g.run(25 * u, 25 * u + 25)
        for r in T + tmpv: va.free(r)

    vo = va.alloc(1)
    a.salu("s_lshl_b32", sT0, sRT, 7)
    a.salu("s_lshr_b32", sT1, sW, 1)
    a.salu("s_lshl_b32", sT1, sT1, 6)
    a.salu("s_add_u32", sT0, sT0, sT1)
    a.salu("s_and_b32", sT1, sW, 1)
    a.salu("s_add_u32", sT0, sT0, sT1)
    a.valu("v_lshl_add_u32", t0, vi, 1, sT0)
    a.valu("v_mul_u32_u24", t0, 2560, t0)
    a.valu("v_mul_u32_u24", t1, 40, vg)
    a.salu("s_mul_i32", sT0, sCT, 160)
    if not isA: a.salu("s_add_u32", sT0, sT0, 1280)
    a.valu("v_add3_u32", vo, t0, t1, sT0)
    a.s_mov(sT1, 32 * 2560)
    for b in range(2):
        out = va.alloc(10, 2)
        for t in range(5): pack2(a, out[2 * t:2 * t + 2], acc[b][t])
        so = 0 if b == 0 else sT1
        a.buf_store(out[0:4], vo, srdOUT, so, 0)
        a.buf_store(out[4:8], vo, srdOUT, so, 16)
        a.buf_store(out[8:10], vo, srdOUT, so, 32)
    print(f"; K2{br}: vgpr high {va.high}, agpr high {aa.high}", file=sys.stderr)


def kd(name):
    return f""".p2align 6
.amdhsa_kernel {name}
  .amdhsa_next_free_vgpr 512
  .amdhsa_next_free_sgpr 102
  .amdhsa_accum_offset 256
  .amdhsa_group_segment_fixed_size 0
  .amdhsa_kernarg_size 72
  .amdhsa_user_sgpr_count 2
  .amdhsa_user_sgpr_kernarg_segment_ptr 1
  .amdhsa_system_sgpr_workgroup_id_x 1
.end_amdhsa_kernel
"""


def build(which=("k1", "k2")):
    out = []
    lds1 = P.NG * 4 * P.SLOT
    lds2 = KVL + 8 * 7168
    if "k1" in which: out.append(f"; @launch kernel=k1_kernel grid=(256,1,1) block=(256,1,1) lds={lds1}")
    if "k2" in which: out.append(f"; @launch kernel=k2_kernel grid=(256,1,1) block=(256,1,1) lds={lds2}")
    out.append('.amdgcn_target "amdgcn-amd-amdhsa--gfx950"')
    out.append(".text")
    for k in ("k1", "k2"):
        if k not in which: continue
        out += [f".globl {k}_kernel", ".p2align 8", f".type {k}_kernel,@function", f"{k}_kernel:"]
        pro, body = (k1_prologue, k1_body) if k == "k1" else (k2_prologue, k2_body)
        a = Asm(); pro(a); body(a, "A"); a.raw("s_endpgm"); a.finalize(); out.append(a.text())
        print(k, "A", dict(a.stats()), file=sys.stderr)
        a = Asm(); a.label(f"L_{k}_B"); body(a, "B"); a.label(f"L_{k}_end"); a.raw("s_endpgm"); a.finalize(); out.append(a.text())
        print(k, "B", dict(a.stats()), file=sys.stderr)
        if k == "k1":
            out.append(".p2align 6")
            out.append(".type k1_table,@object")
            out.append("k1_table:")
            for r in k1_table(): out.append("  .long " + ", ".join(str(x) for x in r))
            out.append(".size k1_table, 512")
    out.append('.section .rodata,"a"')
    for k in ("k1", "k2"):
        if k in which: out.append(kd(f"{k}_kernel"))
    return "\n".join(out) + "\n"


if __name__ == "__main__":
    import argparse
    ap = argparse.ArgumentParser()
    ap.add_argument("-o", default="k.s")
    ap.add_argument("--which", default="k1,k2")
    ap.add_argument("--set", nargs="*", default=[])
    args = ap.parse_args()
    for kv in args.set:
        k, v = kv.split("=")
        setattr(P, k, eval(v))
    open(args.o, "w").write(build(tuple(args.which.split(","))))
```
